```python
import torch

def _softmax(x, axis=-1):
    return torch.softmax(x, dim=axis)

def _gelu(x):
    return torch.nn.functional.gelu(x, approximate='tanh')

def _silu(x):
    return torch.nn.functional.silu(x)

def _sigmoid(x):
    return torch.sigmoid(x)

def _layernorm(x, axis=-1, eps=1e-05):
    m = x.mean(dim=axis, keepdim=True)
    v = x.var(dim=axis, keepdim=True, unbiased=False)
    return (x - m) / torch.sqrt(v + eps)

def _scatter_add(tgt, idx, src, axis=0):
    return tgt.clone().index_add_(axis, idx, src)

def _segment_sum(src, seg, n):
    out = torch.zeros((n,) + src.shape[1:], dtype=src.dtype)
    return out.index_add_(0, seg, src)

def _pad(x, pw):
    flat = tuple((v for pair in reversed(pw) for v in pair))
    return torch.nn.functional.pad(x, flat)
kernel_name = 'standalone__autoregressive_conv_wavernn__speech'

def setup_inputs():

    _w = lambda a: (lambda t: t.to(torch.bfloat16) if t.is_floating_point() else t)(torch.as_tensor(a))
    B, T, D, K = (2, 1000, 512, 5)
    return {'x': _w((lambda *s: torch.randn(*s, dtype=torch.bfloat16) * 0.05)(B, T, D)), 'w': _w((lambda *s: torch.randn(*s, dtype=torch.bfloat16) * 0.05)(K, D, 2 * D))}

def reference(x, w):
    B, T, D = x.shape
    K = w.shape[0]
    dil = 2
    pad = (K - 1) * dil
    xp = _pad(x, ((0, 0), (pad, 0), (0, 0)))
    h = torch.einsum('btd,de->bte', xp[:, 0:T, :], w[0])
    for i in range(1, K):
        h = h + torch.einsum('btd,de->bte', xp[:, i * dil:i * dil + T, :], w[i])
    f, g = (h[..., :D].clone(), h[..., D:].clone())
    return torch.tanh(f) * _sigmoid(g)
```

```python
import sys

KNAME = "standalone__autoregressive_conv_wavernn__speech_kernel"

class G:
    def __init__(self):
        self.L = []
    def e(self, s): self.L.append("    " + s)
    def lab(self, s): self.L.append(s + ":")
    def c(self, s): self.L.append("    ; " + s)
    def text(self): return "\n".join(self.L) + "\n"

def gen(opts):
    g = G()
    e = g.e
    WAVE_LDS = 38912
    XB = [0, 9216]
    WR = 18432
    NSLOT = 10
    LDS_TOTAL = 4 * WAVE_LDS
    V_ADDRA = 10
    V_ADDRB = 20
    V_XB, V_X0, V_W = 21, 22, 23
    VA = [24, 40]
    VB = [56, 64]
    S_WAVE = 24; S_LBASE = 25; S_XOFF = 26; S_WOFF = 27; S_T0 = 28; S_E0 = 29
    S_TMP = 30; S_TMP2 = 31

    head = f"""; Kernarg layout (40 bytes, ptrs only, base s[0:1]): 0: x bf16 (2,1000,512); 8: w bf16 (5,512,1024);
; @launch grid=(256,1,1) block=(256,1,1) lds={LDS_TOTAL}
.amdgcn_target "amdgcn-amd-amdhsa--gfx950"
.text
.globl {KNAME}
.p2align 8
.type {KNAME},@function
{KNAME}:
"""
    e("s_cmp_ge_u32 s2, 256")
    e("s_cbranch_scc1 L_done")
    e("s_load_dwordx2 s[4:5], s[0:1], 0")
    e("s_load_dwordx2 s[6:7], s[0:1], 8")
    e("s_load_dwordx2 s[8:9], s[0:1], 16")
    e("s_and_b32 s32, s2, 7")
    e("s_lshr_b32 s33, s2, 3")
    e("s_and_b32 s34, s32, 1")
    e("s_lshr_b32 s35, s32, 1")
    e("s_and_b32 s36, s33, 7")
    e("s_lshr_b32 s37, s33, 3")
    e("s_lshl_b32 s35, s35, 2")
    e("s_add_u32 s35, s35, s37")
    e(f"s_lshl_b32 s{S_T0}, s36, 7")
    e(f"s_lshl_b32 s{S_E0}, s35, 5")
    e("v_lshrrev_b32 v1, 6, v0")
    e("s_nop 0")
    e(f"v_readfirstlane_b32 s{S_WAVE}, v1")
    e("v_and_b32 v2, 63, v0")
    e("s_nop 3")
    e(f"s_mul_i32 s{S_LBASE}, s{S_WAVE}, {WAVE_LDS}")
    e(f"s_lshl_b32 s{S_XOFF}, s{S_WAVE}, 8")
    e(f"s_lshl_b32 s{S_WOFF}, s{S_WAVE}, 18")
    e(f"s_lshl_b32 s{S_TMP}, s{S_E0}, 1")
    e(f"s_add_u32 s{S_WOFF}, s{S_WOFF}, s{S_TMP}")
    e("v_and_b32 v3, 31, v2")
    e("v_lshrrev_b32 v4, 5, v2")
    for i in range(5):
        e(f"v_add_u32 v5, {2*i}, v3")
        e("v_bfe_u32 v6, v5, 2, 2")
        e("v_lshlrev_b32 v7, 6, v5")
        e(f"v_add_u32 v7, s{S_LBASE}, v7")
        for kk2 in range(2):
            e(f"v_add_u32 v8, {2*kk2}, v4")
            e("v_xor_b32 v8, v8, v6")
            e(f"v_lshl_add_u32 v{V_ADDRA+i*2+kk2}, v8, 4, v7")
    e("v_bfe_u32 v5, v2, 2, 2")
    e("v_lshl_add_u32 v5, v4, 3, v5")
    e("v_lshlrev_b32 v5, 6, v5")
    e("v_bfe_u32 v6, v2, 4, 1")
    e("v_lshlrev_b32 v6, 5, v6")
    e("v_and_b32 v7, 3, v2")
    e("v_lshl_add_u32 v6, v7, 3, v6")
    e("v_add_u32 v5, v5, v6")
    e(f"v_add_u32 v{V_ADDRB}, s{S_LBASE}, v5")
    e("v_and_b32 v5, 3, v2")
    e("v_bfe_u32 v6, v2, 4, 2")
    e("v_xor_b32 v5, v5, v6")
    e("v_lshrrev_b32 v6, 2, v2")
    e(f"v_add_u32 v6, s{S_T0}, v6")
    e("v_lshlrev_b32 v6, 10, v6")
    e(f"v_lshl_add_u32 v{V_XB}, v5, 4, v6")
    e(f"v_subrev_u32 v{V_X0}, 8192, v{V_XB}")
    e("v_lshrrev_b32 v5, 2, v2")
    e("v_lshlrev_b32 v5, 11, v5")
    e("v_and_b32 v6, 3, v2")
    e(f"v_lshl_add_u32 v{V_W}, v6, 4, v5")
    e("s_waitcnt lgkmcnt(0)")
    e("s_mul_i32 s33, s34, 1024000")
    e("s_add_u32 s12, s4, s33")
    e("s_addc_u32 s13, s5, 0")
    e("s_mov_b32 s14, 1024000")
    e("s_mov_b32 s15, 0x00020000")
    e("s_mov_b32 s16, s6")
    e("s_mov_b32 s17, s7")
    e("s_mov_b32 s18, 5242880")
    e("s_mov_b32 s19, 0x00020000")
    e("s_add_u32 s20, s8, s33")
    e("s_addc_u32 s21, s9, 0")
    e("s_mov_b32 s22, 1024000")
    e("s_mov_b32 s23, 0x00020000")

    issued = []
    def dma_x(c):
        for n in range(9):
            lds = XB[c & 1] + 1024 * n
            src = 64 * c + (0 if n == 0 else (16 * n - 8) * 1024)
            e(f"s_add_u32 m0, s{S_LBASE}, {lds}")
            e(f"s_add_u32 s{S_TMP}, s{S_XOFF}, {src}")
            vo = V_X0 if n == 0 else V_XB
            e(f"buffer_load_dwordx4 v{vo}, s[12:15], s{S_TMP} offen lds")
            issued.append(("x", c))
    def stage_of(s):
        c = s // 10; r = s % 10; kk2 = r // 5; i = r % 5
        return c, kk2, i
    def dma_w(s):
        c, kk2, i = stage_of(s)
        lds = WR + 2048 * (s % NSLOT)
        src = i * 1048576 + (32 * c + 16 * kk2) * 2048
        e(f"s_add_u32 m0, s{S_LBASE}, {lds}")
        e(f"s_add_u32 s{S_TMP}, s{S_WOFF}, {src}")
        e(f"buffer_load_dwordx4 v{V_W}, s[16:19], s{S_TMP} offen lds")
        e(f"buffer_load_dwordx4 v{V_W}, s[16:19], s{S_TMP} offen offset:1024 lds")
        issued.append(("w", s)); issued.append(("w", s))
    def wait_for(tags):
        last = -1
        for idx, t in enumerate(issued):
            if t in tags: last = idx
        n = len(issued) - 1 - last
        assert n <= 63
        e(f"s_waitcnt vmcnt({n})")

    def frag_reads(s):
        c, kk2, i = stage_of(s)
        st = s & 1
        out = []
        slot = WR + 2048 * (s % NSLOT)
        out.append(f"ds_read_b64_tr_b16 v[{VB[st]}:{VB[st]+1}], v{V_ADDRB} offset:{slot}")
        out.append(f"ds_read_b64_tr_b16 v[{VB[st]+2}:{VB[st]+3}], v{V_ADDRB} offset:{slot+256}")
        out.append(f"ds_read_b64_tr_b16 v[{VB[st]+4}:{VB[st]+5}], v{V_ADDRB} offset:{slot+1024}")
        out.append(f"ds_read_b64_tr_b16 v[{VB[st]+6}:{VB[st]+7}], v{V_ADDRB} offset:{slot+1280}")
        for t in range(4):
            out.append(f"ds_read_b128 v[{VA[st]+4*t}:{VA[st]+4*t+3}], v{V_ADDRA+i*2+kk2} offset:{XB[c&1]+2048*t}")
        return out

    def mfmas(s):
        st = s & 1
        out = []
        for t in range(4):
            for fg in range(2):
                acc = (t * 2 + fg) * 16
                cin = "0" if s == 0 else f"a[{acc}:{acc+15}]"
                out.append(f"v_mfma_f32_32x32x16_bf16 a[{acc}:{acc+15}], v[{VA[st]+4*t}:{VA[st]+4*t+3}], v[{VB[st]+4*fg}:{VB[st]+4*fg+3}], {cin}")
        return out

    NS = 40
    g.c("prologue DMAs")
    dma_x(0)
    for s in range(NSLOT): dma_w(s)
    dma_x(1)
    wait_for({("x", 0), ("w", 0)})
    for ins in frag_reads(0): e(ins)
    for s in range(NS):
        c, kk2, i = stage_of(s)
        g.c(f"---- step {s}: c={c} kk2={kk2} tap={i}")
        e("s_waitcnt lgkmcnt(0)")
        if s + NSLOT < NS: dma_w(s + NSLOT)
        if s % 10 == 0 and c >= 1 and c + 1 < 4: dma_x(c + 1)
        mf = mfmas(s)
        if s + 1 < NS:
            c1, _, _ = stage_of(s + 1)
            wait_for({("x", c1), ("w", s + 1)})
            rd = frag_reads(s + 1)
            for k in range(8):
                e(rd[k]); e(mf[k])
        else:
            for m in mf: e(m)
    g.c("epilogue: cross-wave reduction through LDS")
    e("s_nop 15"); e("s_nop 15")
    e("s_waitcnt vmcnt(0) lgkmcnt(0)")
    e("s_barrier")
    e("v_lshlrev_b32 v5, 4, v2")
    e(f"s_lshl_b32 s{S_TMP}, s{S_WAVE}, 15")
    e(f"v_add_u32 v5, s{S_TMP}, v5")
    for t in range(4):
        for fg in range(2):
            for u in range(4):
                acc = (t * 2 + fg) * 16 + 4 * u
                e(f"ds_write_b128 v5, a[{acc}:{acc+3}] offset:{(t*8+fg*4+u)*1024}")
    e("s_waitcnt lgkmcnt(0)")
    e("s_barrier")
    e("v_lshlrev_b32 v6, 4, v2")
    e(f"s_lshl_b32 s{S_TMP}, s{S_WAVE}, 13")
    e(f"v_add_u32 v6, s{S_TMP}, v6")
    e("v_add_u32 v7, 0x10000, v6")
    VAL = 72; TMP = 104
    for fg in range(2):
        for u in range(4):
            dst = VAL + fg * 16 + 4 * u
            off = (fg * 4 + u) * 1024
            e(f"ds_read_b128 v[{dst}:{dst+3}], v6 offset:{off}")
            e(f"ds_read_b128 v[{TMP}:{TMP+3}], v6 offset:{off+32768}")
            e(f"ds_read_b128 v[{TMP+4}:{TMP+7}], v7 offset:{off}")
            e(f"ds_read_b128 v[{TMP+8}:{TMP+11}], v7 offset:{off+32768}")
            e("s_waitcnt lgkmcnt(0)")
            for j in range(4):
                e(f"v_add_f32 v{TMP+j}, v{TMP+j}, v{TMP+4+j}")
                e(f"v_add_f32 v{dst+j}, v{dst+j}, v{TMP+8+j}")
                e(f"v_add_f32 v{dst+j}, v{dst+j}, v{TMP+j}")
    e("s_mov_b32 s40, 0x4038aa3b")
    e("s_mov_b32 s41, 0xbfb8aa3b")
    e("s_mov_b32 s42, 0x42700000")
    e(f"s_lshl_b32 s{S_TMP}, s{S_WAVE}, 5")
    e(f"s_add_u32 s{S_TMP}, s{S_TMP}, s{S_T0}")
    e(f"v_lshl_add_u32 v8, v4, 2, s{S_TMP}")
    e("v_lshlrev_b32 v8, 10, v8")
    e(f"v_add_u32 v9, s{S_E0}, v3")
    e("v_lshl_add_u32 v8, v9, 1, v8")
    for r in range(16):
        f = VAL + r; gg = VAL + 16 + r
        e(f"v_mul_f32 v{TMP}, s40, v{f}")
        e(f"v_mul_f32 v{TMP+1}, s41, v{gg}")
        e(f"v_min_f32 v{TMP}, s42, v{TMP}")
        e(f"v_min_f32 v{TMP+1}, s42, v{TMP+1}")
        e(f"v_exp_f32 v{TMP}, v{TMP}")
        e(f"v_exp_f32 v{TMP+1}, v{TMP+1}")
        e("s_nop 0")
        e(f"v_add_f32 v{TMP+2}, 1.0, v{TMP}")
        e(f"v_add_f32 v{TMP+3}, 1.0, v{TMP+1}")
        e(f"v_mul_f32 v{TMP+2}, v{TMP+2}, v{TMP+3}")
        e(f"v_rcp_f32 v{TMP+2}, v{TMP+2}")
        e(f"v_add_f32 v{TMP}, -1.0, v{TMP}")
        e("s_nop 0")
        e(f"v_mul_f32 v{f}, v{TMP}, v{TMP+2}")
    for r in range(0, 16, 2):
        e(f"v_cvt_pk_bf16_f32 v{VAL+r}, v{VAL+r}, v{VAL+r+1}")
    for r in range(16):
        row = 8 * (r >> 2) + (r & 3)
        e(f"s_mov_b32 s{S_TMP2}, {row*1024}")
        if r % 2 == 0:
            e(f"buffer_store_short v{VAL+r}, v8, s[20:23], s{S_TMP2} offen")
        else:
            e(f"buffer_store_short_d16_hi v{VAL+r-1}, v8, s[20:23], s{S_TMP2} offen")
    g.lab("L_done")
    e("s_endpgm")
    tail = f""".section .rodata,"a"
.p2align 6
.amdhsa_kernel {KNAME}
  .amdhsa_next_free_vgpr 256
  .amdhsa_next_free_sgpr 48
  .amdhsa_accum_offset 128
  .amdhsa_group_segment_fixed_size 0
  .amdhsa_kernarg_size 40
  .amdhsa_user_sgpr_count 2
  .amdhsa_user_sgpr_kernarg_segment_ptr 1
  .amdhsa_system_sgpr_workgroup_id_x 1
.end_amdhsa_kernel
"""
    return head + g.text() + tail

if __name__ == "__main__":
    out = sys.argv[1]
    open(out, "w").write(gen({}))
```
